```python
import torch

def _softmax(x, axis=-1):
    return torch.softmax(x, dim=axis)
def _gelu(x):
    return torch.nn.functional.gelu(x, approximate="tanh")
def _silu(x):
    return torch.nn.functional.silu(x)
def _sigmoid(x):
    return torch.sigmoid(x)
def _layernorm(x, axis=-1, eps=1e-5):
    m = x.mean(dim=axis, keepdim=True)
    v = x.var(dim=axis, keepdim=True, unbiased=False)
    return (x - m) / torch.sqrt(v + eps)
def _scatter_add(tgt, idx, src, axis=0):
    return tgt.clone().index_add_(axis, idx, src)
def _segment_sum(src, seg, n):
    out = torch.zeros((n,) + src.shape[1:], dtype=src.dtype)
    return out.index_add_(0, seg, src)
def _pad(x, pw):
    flat = tuple(v for pair in reversed(pw) for v in pair)
    return torch.nn.functional.pad(x, flat)

kernel_name = 'gated_mix__sliding_block_cached__geglu_ffn__decode'

def setup_inputs():

    _w = (lambda a: (lambda t: t.to(torch.bfloat16) if t.is_floating_point() else t)(torch.as_tensor(a)))
    def _A_setup():
        B, Sq, D = 1, 1, 640
        Hq, Hkv, Sk, Dh = 32, 32, 32768, 192
        assert Hq % Hkv == 0, (Hq, Hkv)
        return {
            "x": _w((lambda *s: torch.randn(*s, dtype=torch.bfloat16) * 0.05)(B, Sq, D)),
            "k_cache": _w((lambda *s: torch.randn(*s, dtype=torch.bfloat16) * 6.4)(B, Hkv, Sk, Dh)),
            "v_cache": _w((lambda *s: torch.randn(*s, dtype=torch.bfloat16) * 0.2)(B, Hkv, Sk, Dh)),
            "wq": _w((lambda *s: torch.randn(*s, dtype=torch.bfloat16) * 6.4)(D, Hq * Dh) * (D ** -0.5)),
            "wo": _w((lambda *s: torch.randn(*s, dtype=torch.bfloat16) * 0.2)(Hq * Dh, D) * ((Hq * Dh) ** -0.5)),
        }
    _A_in = _A_setup()

    def _B_setup():
        B, S, D, F = 1, 1, 640, 1536
        return {
            "x": _w((lambda *s: torch.randn(*s, dtype=torch.bfloat16) * 0.05)(B, S, D)),
            "w_gate": _w((lambda *s: torch.randn(*s, dtype=torch.bfloat16) * 0.05)(D, F)),
            "w_up": _w((lambda *s: torch.randn(*s, dtype=torch.bfloat16) * 0.05)(D, F)),
            "w_down": _w((lambda *s: torch.randn(*s, dtype=torch.bfloat16) * 0.05)(F, D)),
        }
    _B_in = _B_setup()

    return {
        "A_x": _A_in["x"],
        "A_k_cache": _A_in["k_cache"],
        "A_v_cache": _A_in["v_cache"],
        "A_wq": _A_in["wq"],
        "A_wo": _A_in["wo"],
        "B_x": _B_in["x"],
        "B_w_gate": _B_in["w_gate"],
        "B_w_up": _B_in["w_up"],
        "B_w_down": _B_in["w_down"],
        "gate_w": _w((lambda *s: torch.randn(*s, dtype=torch.bfloat16) * 0.1)(640) * 16.0),
    }

def reference(A_x, A_k_cache, A_v_cache, A_wq, A_wo, B_x, B_w_gate, B_w_up, B_w_down, gate_w):
    def _A_ref(x, k_cache, v_cache, wq, wo):
        B, Sq, D = x.shape
        Hq, Dh = 32, 192
        Hkv, Sk = k_cache.shape[1], k_cache.shape[2]
        W = min(4096, max(256, Sk // 4))
        rep = Hq // Hkv
        q = (lambda x, *d: x.permute(*d))((x @ wq).reshape(B, Sq, Hq, Dh), 0, 2, 1, 3)
        k = (lambda x, n, axis: torch.repeat_interleave(x, n, dim=axis))(k_cache[:, :, Sk - W:, :], rep, axis=1)
        v = (lambda x, n, axis: torch.repeat_interleave(x, n, dim=axis))(v_cache[:, :, Sk - W:, :], rep, axis=1)
        scores = torch.einsum("bhqd,bhkd->bhqk", q, k) * (Dh ** -0.5)
        p = _softmax(scores, axis=-1)
        o = torch.einsum("bhqk,bhkd->bhqd", p, v)
        return (lambda x, *d: x.permute(*d))(o, 0, 2, 1, 3).reshape(B, Sq, Hq * Dh) @ wo

    def _B_ref(x, w_gate, w_up, w_down):
        return (_gelu(x @ w_gate) * (x @ w_up)) @ w_down

    x = A_x
    g = _sigmoid((x * gate_w).sum(-1, keepdims=True))
    a = _A_ref(x, A_k_cache, A_v_cache, A_wq, A_wo)
    b = _B_ref(x, B_w_gate, B_w_up, B_w_down)
    return g * a + (1 - g) * b
```

```python
import re

def regs_of(tok):
    tok = tok.strip()
    if tok.startswith('-'): tok = tok[1:]
    if tok.startswith('abs(') or tok.startswith('|'):
        tok = tok.strip('|').replace('abs(', '').rstrip(')')
    m = re.fullmatch(r'([vs])(\d+)', tok)
    if m: return {(m.group(1), int(m.group(2)))}
    m = re.fullmatch(r'([vs])\[(\d+):(\d+)\]', tok)
    if m: return {(m.group(1), i) for i in range(int(m.group(2)), int(m.group(3)) + 1)}
    if tok in ('vcc', 'vcc_lo', 'vcc_hi'): return {('s', 'vcc')}
    if tok in ('exec', 'exec_lo', 'exec_hi'): return {('s', 'exec')}
    return set()

TRANS = ('v_exp_f32', 'v_log_f32', 'v_rcp_f32', 'v_rsq_f32', 'v_sqrt_f32', 'v_sin_f32', 'v_cos_f32')

class Ins:
    def __init__(self, text):
        self.text = text
        t = text.split(';')[0].strip()
        parts = t.split(None, 1)
        self.mn = parts[0]
        rest = parts[1] if len(parts) > 1 else ''
        ops = []
        depth = 0; cur = ''
        for ch in rest:
            if ch == '[': depth += 1
            if ch == ']': depth -= 1
            if ch == ',' and depth == 0:
                ops.append(cur.strip()); cur = ''
            else:
                cur += ch
        if cur.strip(): ops.append(cur.strip())
        if ops:
            last = ops[-1].split()
            ops[-1] = last[0]
        self.ops = ops
        mn = self.mn
        self.valu = mn.startswith('v_')
        self.mfma = mn.startswith('v_mfma')
        self.dpp = mn.endswith('_dpp')
        self.trans = mn.replace('_e32', '').replace('_e64', '') in TRANS
        self.dot = mn.startswith('v_dot')
        self.perml = mn.startswith('v_permlane')
        self.rdlane = mn.startswith('v_readfirstlane') or mn.startswith('v_readlane')
        self.vmem = mn.startswith('buffer_') or mn.startswith('global_')
        self.ds = mn.startswith('ds_')
        self.store = self.vmem and ('store' in mn)
        self.wide_store = self.store and ('x3' in mn or 'x4' in mn)
        R = [regs_of(o) for o in ops]
        self.dst = set(); self.src = set(); self.srcC = set(); self.srcAB = set(); self.sdata = set()
        if self.mfma:
            self.dst = R[0]; self.srcAB = R[1] | R[2]; self.srcC = R[3]; self.src = self.srcAB | self.srcC
        elif self.valu:
            if self.perml:
                self.dst = R[0] | R[1]; self.src = R[0] | R[1]
            elif '_co_' in mn:
                self.dst = R[0] | R[1]; self.src = set().union(*R[2:])
            else:
                self.dst = R[0]; self.src = set().union(*R[1:]) if len(R) > 1 else set()
                if mn.startswith('v_fmac') or mn.startswith('v_dot2c') or mn.startswith('v_writelane') or self.dpp:
                    self.src |= R[0]
                if mn.startswith('v_dot2c'):
                    self.srcC = R[0]; self.srcAB = R[1] | R[2]
                if mn.startswith('v_dot2_'):
                    self.srcC = R[3]; self.srcAB = R[1] | R[2]
        elif self.vmem:
            if self.store:
                self.src = set().union(*R)
                self.sdata = R[0] if mn.startswith('buffer_') else R[1]
            else:
                self.dst = R[0]; self.src = set().union(*R[1:])
        elif self.ds:
            if 'read' in mn or 'bpermute' in mn or 'swizzle' in mn:
                self.dst = R[0]; self.src = set().union(*R[1:])
            else:
                self.src = set().union(*R)
        elif mn.startswith('s_'):
            if R and not (mn.startswith('s_cmp') or mn.startswith('s_cbranch') or mn.startswith('s_waitcnt')):
                self.dst = R[0]; self.src = set().union(*R[1:]) if len(R) > 1 else set()
        self.states = 1
        if mn == 's_nop': self.states = int(ops[0], 0) + 1

def vg(s): return {r for r in s if r[0] == 'v'}
def sg(s): return {r for r in s if r[0] == 's'}

def need(P, C):
    n = 0
    if P.valu and not P.mfma:
        pv = vg(P.dst); ps = sg(P.dst)
        if C.dpp and pv & C.src: n = max(n, 2)
        if C.rdlane and pv & C.src: n = max(n, 1)
        if C.perml and pv & C.src: n = max(n, 2)
        if C.mfma and pv & C.src: n = max(n, 2)
        if ps:
            if C.valu and ps & C.src: n = max(n, 4 if (C.rdlane or C.mn.startswith('v_writelane')) else 2)
            if C.vmem and ps & C.src: n = max(n, 5)
            assert ('s', 'exec') not in ps, "VALU exec write not modelled"
        if P.trans and pv & C.src and not C.trans: n = max(n, 1)
        if P.dot:
            same = (C.mn == P.mn)
            if same:
                if pv & C.srcAB: n = max(n, 3)
            elif pv & (C.src | C.dst): n = max(n, 3)
    if P.mfma:
        d = P.dst
        if C.mfma:
            if d & C.srcAB: n = max(n, 8)
            if d & C.srcC and C.srcC != d: n = max(n, 6)
            if d & C.dst and C.srcC != d: n = max(n, 8)
        elif d & (C.src | C.dst): n = max(n, 8)
        if C.valu and not C.mfma and (P.srcC & C.dst): n = max(n, 3)
    if P.wide_store and P.sdata & C.dst:
        n = max(n, 2)
    return n

class Asm:
    def __init__(self):
        self.lines = []; self.hist = []
        self.vm = []
        self.vm_done = 0
        self.nlabel = 0
    def raw(self, text): self.lines.append(text)
    def label(self, name): self.lines.append(name + ':')
    def comment(self, t): self.lines.append('    ; ' + t)
    def __call__(self, text):
        C = Ins(text)
        dist = 0; pad = 0
        for P in reversed(self.hist[-12:]):
            pad = max(pad, need(P, C) - dist)
            dist += P.states
            if dist >= 10: break
        if pad > 0:
            nop = Ins('s_nop %d' % (pad - 1)); self.hist.append(nop); self.lines.append('    ' + nop.text)
        self.hist.append(C); self.lines.append('    ' + text)
        if C.vmem:
            self.vm.append('S' if C.store else 'L')
            return len(self.vm) - 1
        return None
    def untracked(self, text):
        n = len(self.vm)
        self(text)
        del self.vm[n:]
    def wait_vm(self, op):
        if op is None or op < self.vm_done: return
        n = sum(1 for x in self.vm[op + 1:] if x == 'L')
        assert n <= 63
        self('s_waitcnt vmcnt(%d)' % n)
        self.vm_done = op + 1
    def wait_all_vm(self):
        self('s_waitcnt vmcnt(0)'); self.vm_done = len(self.vm)
    def text(self): return '\n'.join(self.lines) + '\n'
```

```python
import sys
from asmlib import Asm
KN = "gated_mix__sliding_block_cached__geglu_ffn__decode_kernel"
HEADER = open('gated_mix__sliding_block_cached__geglu_ffn__decode.s.ref').read().split('; Override launch')[0]

H0 = 4096;              H0R = 1792
H05 = H0 + 256 * H0R
H1 = H05 + 32 * 1024
H2 = H1 + 256 * 1024
WS_END = H2 + 256 * 512
SP = 1168; LP = 0
LQ = LP + 8 * SP
SO = 1552; LO = LQ + 384
SY = 400; LY = LO + 8 * SO
LDS_BYTES = LY + 8 * SY
LOG2E = 0x3fb8aa3b
SCALE = 0x3d93cd3a
SPIN = 0x200000

def gen(path, stamps=False, depth=4, k_first=2, g0=16, g0w=4, g1=10, g1w=4, odepth=None, kv=" nt", pf=" nt", of=" nt",
        code_kb=8, sleep=1, depth_sched=None, o_after_v=False):
    a = Asm()
    nst = [0]
    def stamp():
        if stamps:
            assert nst[0] < 14
            a("s_memrealtime s[%d:%d]" % (70 + 2 * nst[0], 71 + 2 * nst[0])); nst[0] += 1
    a.raw(HEADER.rstrip('\n'))
    a.raw("; @launch grid=(256,1,1) block=(512,1,1) lds=%d" % LDS_BYTES)
    a.raw('.amdgcn_target "amdgcn-amd-amdhsa--gfx950"')
    a.raw(".text"); a.raw(".globl " + KN); a.raw(".p2align 8"); a.raw(".type %s,@function" % KN); a.label(KN)

    vLane, vKV = 0, 1
    vPA, vPS = 2, 4
    vC, vJ16 = 6, 7
    vM = 8
    vQ = 12
    vS = 24
    vD = 32
    vB = 44
    vBd = 52
    vG, vOMG = 56, 57
    vT = 58
    PREG = 64
    VREG = 104
    KREG = 160
    def kreg(i): return KREG + 4 * i
    def vreg(i): return VREG + 4 * i if i < 14 else PREG + 4 * (i - 14)
    def oreg(i): return KREG + 4 * i
    vYa, vYb = 192, 200
    vX = 208

    def r4(r): return "v[%d:%d]" % (r, r + 3)
    def dpp(op, regs, ctrl):
        for r in regs:
            a("%s_dpp v%d, v%d, v%d %s row_mask:0xf bank_mask:0xf" % (op, r, r, r, ctrl))
    def red8(op, regs):
        dpp(op, regs, "quad_perm:[1,0,3,2]"); dpp(op, regs, "quad_perm:[2,3,0,1]"); dpp(op, regs, "row_half_mirror")
    def red_rows(op, regs, tmps, upto32=False):
        dpp(op, regs, "row_ror:8")
        for sw in (["v_permlane16_swap_b32"] if upto32 else ["v_permlane16_swap_b32", "v_permlane32_swap_b32"]):
            for r, t in zip(regs, tmps): a("v_mov_b32 v%d, v%d" % (t, r))
            for r, t in zip(regs, tmps): a("%s v%d, v%d" % (sw, r, t))
            for r, t in zip(regs, tmps): a("%s v%d, v%d, v%d" % (op, r, r, t))
    def rbf(dst, src):
        a("v_cvt_pk_bf16_f32 v%d, v%d, v%d" % (dst, src, src))
        a("v_and_b32 v%d, 0xffff0000, v%d" % (dst, dst))
    def poll(name, op_ids, tagregs, reloads):
        a.wait_vm(max(op_ids))
        a("s_mov_b32 s34, %d" % SPIN)
        a.label("L_%s_chk" % name)
        a("v_cmp_ne_u32 vcc, s33, v%d" % tagregs[0])
        for t in tagregs[1:]:
            a("v_cmp_ne_u32 s[66:67], s33, v%d" % t)
            a("s_or_b64 vcc, vcc, s[66:67]")
        a("s_cbranch_vccz L_%s_ok" % name)
        a("s_mov_b64 exec, vcc")
        if sleep: a("s_sleep %d" % sleep)
        for t in reloads: a.untracked(t)
        a("s_sub_u32 s34, s34, 1")
        a("s_waitcnt vmcnt(0)")
        a("s_cbranch_scc0 L_%s_chk" % name)
        a.label("L_%s_ok" % name)
        a("s_mov_b64 exec, -1")

    stream = [("K", i) for i in range(24)] + [("V", i) for i in range(24)]
    sidx = [0]; kop = {}; vop = {}; issued = []; cur_so = [None]
    def cur_depth():
        if depth_sched is None: return depth
        d = depth
        for pos, dd in depth_sched:
            if sidx[0] >= pos: d = dd
        return d
    def pump(n=1, throttle=True):
        for _ in range(n):
            if sidx[0] >= len(stream): return
            t, i = stream[sidx[0]]
            d = cur_depth()
            if throttle and len(issued) >= d: a.wait_vm(issued[-d])
            sidx[0] += 1
            off = (i // 3) * 3072 + (i % 3) * 128
            so, io = off // 4096 * 4096, off % 4096
            if so != cur_so[0]:
                a("s_movk_i32 s65, %d" % so); cur_so[0] = so
            r = kreg(i) if t == "K" else vreg(i)
            srd = "s[36:39]" if t == "K" else "s[40:43]"
            op = a("buffer_load_dwordx4 %s, v%d, %s, s65 offen offset:%d%s" % (r4(r), vKV, srd, io, kv))
            (kop if t == "K" else vop)[i] = op; issued.append(op)
    def pump_to(t, i):
        while sidx[0] < len(stream) and sidx[0] < stream.index((t, i)): pump()

    a("s_cmp_ge_u32 s2, 256")
    a("s_cbranch_scc1 L_end")
    a("s_load_dwordx16 s[4:19], s[0:1], 0")
    a("s_load_dwordx8 s[20:27], s[0:1], 64")
    a("s_load_dwordx2 s[28:29], s[0:1], 96")
    stamp()
    a("v_lshrrev_b32 v1, 6, v0")
    a("v_and_b32 v0, 63, v0")
    a("s_and_b32 s30, s2, 31")
    a("v_readfirstlane_b32 s32, v1")
    a("s_lshr_b32 s31, s2, 5")
    a("v_lshrrev_b32 v%d, 3, v0" % vJ16)
    a("v_and_b32 v%d, 7, v0" % vC)
    a("v_mul_u32_u24 v1, 0x6000, v1")
    a("s_mul_i32 s34, s30, 12582912")
    a("s_mul_i32 s35, s31, 196608")
    a("v_mul_u32_u24 v2, 384, v%d" % vJ16)
    a("s_add_u32 s34, s34, s35")
    a("v_lshl_add_u32 v1, v%d, 4, v1" % vC)
    a("s_add_u32 s34, s34, %d" % (28672 * 384))
    a("v_add_u32 v1, v1, v2")
    a("s_mov_b32 s38, 196608"); a("s_mov_b32 s39, 0x20000")
    a("s_mul_i32 s35, s31, 80"); a("s_mul_i32 s3, s32, 10"); a("s_add_u32 s35, s35, s3")
    a("s_waitcnt lgkmcnt(0)")
    a("s_add_u32 s36, s6, s34"); a("s_addc_u32 s37, s7, 0")
    pump(k_first, throttle=False)
    a("s_add_u32 s40, s8, s34"); a("s_addc_u32 s41, s9, 0"); a("s_mov_b32 s42, 196608"); a("s_mov_b32 s43, 0x20000")
    a("s_lshl_b32 s3, s35, 1")
    a("s_add_u32 s66, s4, s3"); a("s_addc_u32 s67, s5, 0")
    a("s_load_dwordx4 s[60:63], s[66:67], 0")
    a("s_load_dword s64, s[66:67], 16")
    a("s_load_dword s33, s[28:29], 0")
    a("s_mul_i32 s34, s35, 12288"); a("s_mul_i32 s3, s30, 384"); a("s_add_u32 s34, s34, s3")
    a("s_add_u32 s10, s10, s34"); a("s_addc_u32 s11, s11, 0")
    a("s_and_b32 s68, s30, 7"); a("s_lshl_b32 s68, s68, 2"); a("s_lshr_b32 s3, s30, 3"); a("s_add_u32 s68, s68, s3")
    a("s_mul_i32 s34, s35, 3072"); a("s_mul_i32 s3, s68, 96"); a("s_add_u32 s34, s34, s3")
    a("s_add_u32 s16, s16, s34"); a("s_addc_u32 s17, s17, 0"); a("s_sub_u32 s16, s16, %d" % (24 * 16)); a("s_subb_u32 s17, s17, 0")
    a("s_add_u32 s18, s18, s34"); a("s_addc_u32 s19, s19, 0"); a("s_sub_u32 s18, s18, %d" % (30 * 16)); a("s_subb_u32 s19, s19, 0")
    a("v_mov_b32 v2, s10"); a("v_mov_b32 v3, s11"); a("v_mov_b32 v4, 12288"); a("v_mov_b32 v5, 0")
    a("v_mov_b32 v%d, v0" % vT); a("v_mov_b32 v%d, 0" % (vT + 1))
    a("v_mov_b32 v%d, 0" % (vT + 2)); a("v_mov_b32 v%d, 0" % (vT + 3))
    a("s_mul_i32 s3, s32, 160")
    a("v_lshl_add_u32 v%d, v0, 2, s3" % (vT + 4))
    a("s_mov_b32 exec_lo, 0xff000000")
    a("v_mov_b32 v2, s16"); a("v_mov_b32 v3, s17"); a("v_mov_b32 v4, 3072")
    a("s_mov_b32 exec_lo, 0xc0000000")
    a("v_mov_b32 v2, s18"); a("v_mov_b32 v3, s19")
    a("s_mov_b32 exec_lo, -1"); a("s_mov_b32 exec_hi, 0xff")
    a("v_lshl_add_u64 v[2:3], v[%d:%d], 4, v[2:3]" % (vT, vT + 1))
    op_gx = a("global_load_dword v%d, v%d, s[4:5]" % (vT + 2, vT + 4))
    op_gw = a("global_load_dword v%d, v%d, s[22:23]" % (vT + 3, vT + 4))
    a("s_mov_b32 exec_hi, 0xf")
    pop = []
    for r in range(10):
        pop.append(a("global_load_dwordx4 %s, v[2:3], off%s" % (r4(PREG + 4 * r), pf)))
        if r < 9: a("v_lshl_add_u64 v[2:3], v[4:5], 0, v[2:3]")
    a("s_mov_b64 exec, -1")
    if code_kb:
        a("s_getpc_b64 s[66:67]")
        a.label("L_pc")
        a("s_sub_u32 s66, s66, L_pc-%s" % KN); a("s_subb_u32 s67, s67, 0")
        a("s_lshl_b32 s3, s32, 10")
        a("v_lshl_add_u32 v2, v0, 4, s3")
        for i in range(0, code_kb, 8):
            op_code = a("global_load_dwordx4 %s, v2, s[66:67]" % r4(vB))
            if i + 8 < code_kb: a("v_add_u32 v2, 8192, v2")
    stamp()
    a("s_mov_b32 s44, s12"); a("s_mov_b32 s45, s13"); a("s_mov_b32 s46, %d" % (6144 * 1280)); a("s_mov_b32 s47, 0x20000")
    a("s_mov_b32 s48, s20"); a("s_mov_b32 s49, s21"); a("s_mov_b32 s50, %d" % (1536 * 1280)); a("s_mov_b32 s51, 0x20000")
    a("s_mov_b32 s52, s28"); a("s_mov_b32 s53, s29"); a("s_mov_b32 s54, %d" % WS_END); a("s_mov_b32 s55, 0x20000")
    a("s_mov_b32 s56, s24"); a("s_mov_b32 s57, s25"); a("s_mov_b32 s58, 1280"); a("s_mov_b32 s59, 0x20000")
    sH0stA, sH0stB, sH0ldA, sH0ldB, sH05st, sH05ld, sH1st, sH1ld, sH2st, sH2ld, sWo, sWd = range(6, 18)
    a("s_lshl_b32 s3, s30, 3"); a("s_add_u32 s34, s3, s31")
    a("s_lshl_b32 s35, s32, 7")
    a("s_mul_i32 s18, s32, 96")
    a("s_mul_i32 s%d, s34, %d" % (sH0stA, H0R)); a("s_add_u32 s%d, s%d, %d" % (sH0stA, sH0stA, H0))
    a("s_add_u32 s%d, s%d, s18" % (sH0stB, sH0stA)); a("s_add_u32 s%d, s%d, 1024" % (sH0stB, sH0stB))
    a("s_add_u32 s%d, s%d, s35" % (sH0stA, sH0stA))
    a("s_mul_i32 s%d, s3, %d" % (sH0ldA, H0R)); a("s_add_u32 s%d, s%d, %d" % (sH0ldA, sH0ldA, H0))
    a("s_add_u32 s%d, s%d, s18" % (sH0ldB, sH0ldA)); a("s_add_u32 s%d, s%d, 1024" % (sH0ldB, sH0ldB))
    a("s_add_u32 s%d, s%d, s35" % (sH0ldA, sH0ldA))
    a("s_lshl_b32 s%d, s30, 10" % sH05ld); a("s_add_u32 s%d, s%d, %d" % (sH05ld, sH05ld, H05))
    a("s_lshl_b32 s19, s31, 3"); a("s_add_u32 s19, s19, s32"); a("s_lshl_b32 s19, s19, 4")
    a("s_add_u32 s%d, s%d, s19" % (sH05st, sH05ld))
    a("s_lshl_b32 s%d, s34, 10" % sH1st); a("s_add_u32 s%d, s%d, s35" % (sH1st, sH1st)); a("s_add_u32 s%d, s%d, %d" % (sH1st, sH1st, H1))
    a("s_lshl_b32 s%d, s30, 13" % sH1ld); a("s_add_u32 s%d, s%d, s35" % (sH1ld, sH1ld)); a("s_add_u32 s%d, s%d, %d" % (sH1ld, sH1ld, H1))
    a("s_lshl_b32 s%d, s2, 9" % sH2st); a("s_add_u32 s%d, s%d, s35" % (sH2st, sH2st)); a("s_add_u32 s%d, s%d, %d" % (sH2st, sH2st, H2))
    a("s_lshl_b32 s%d, s31, 14" % sH2ld); a("s_lshl_b32 s19, s30, 5"); a("s_add_u32 s%d, s%d, s19" % (sH2ld, sH2ld)); a("s_add_u32 s%d, s%d, %d" % (sH2ld, sH2ld, H2))
    a("s_mul_i32 s19, s31, 160")
    a("s_mul_i32 s%d, s30, 192" % sWo); a("s_lshl_b32 s3, s32, 3"); a("s_add_u32 s%d, s%d, s3" % (sWo, sWo))
    a("s_mul_i32 s%d, s%d, 1280" % (sWo, sWo)); a("s_add_u32 s%d, s%d, s19" % (sWo, sWo))
    a("s_mul_i32 s%d, s68, 48" % sWd); a("s_mul_i32 s3, s32, 6"); a("s_add_u32 s%d, s%d, s3" % (sWd, sWd))
    a("s_mul_i32 s%d, s%d, 1280" % (sWd, sWd)); a("s_add_u32 s%d, s%d, s19" % (sWd, sWd))
    a("s_mov_b32 s68, 0x01010101"); a("s_mov_b32 s69, 0x01010101")
    a("v_mov_b32 v%d, 0xffff" % vT)
    a("v_and_b32 v%d, 1, v%d" % (vT + 1, vC)); a("v_lshlrev_b32 v%d, 4, v%d" % (vT + 1, vT + 1))
    a("v_lshlrev_b32 v%d, v%d, v%d" % (vT, vT + 1, vT))
    a("v_lshrrev_b32 v%d, 1, v%d" % (vT + 1, vC))
    for r in range(4):
        a("v_cmp_eq_u32 vcc, %d, v%d" % (r, vT + 1))
        a("v_cndmask_b32 v%d, 0, v%d, vcc" % (vM + r, vT))
    for r in range(8): a("v_mov_b32 v%d, 0" % (vD + r))
    aPw, aPr, aPr2, aZ = vQ, vQ + 1, vQ + 2, vQ + 3
    a("s_mul_i32 s3, s32, %d" % SP)
    a("v_lshl_add_u32 v%d, v0, 5, s3" % aPw)
    a("v_mul_u32_u24 v%d, %d, v%d" % (aZ, SP, vC))
    a("v_lshl_add_u32 v%d, v%d, 2, v%d" % (aPr, vJ16, aZ))
    a("s_mul_i32 s3, s32, 24"); a("s_add_u32 s3, s3, 768")
    a("v_add_u32 v%d, s3, v%d" % (aPr2, aPr))
    a("s_mul_i32 s3, s32, 96")
    a("v_add_u32 v%d, s3, v%d" % (aPr, aPr))
    a("v_lshlrev_b32 v%d, 4, v%d" % (vJ16, vJ16))
    pump(2, throttle=False)
    a.wait_vm(op_gw)
    t0, t1, t2, t3 = vS, vS + 1, vS + 2, vS + 3
    a("v_lshlrev_b32 v%d, 16, v%d" % (t0, vT + 2)); a("v_and_b32 v%d, 0xffff0000, v%d" % (t1, vT + 2))
    a("v_lshlrev_b32 v%d, 16, v%d" % (t2, vT + 3)); a("v_and_b32 v%d, 0xffff0000, v%d" % (t3, vT + 3))
    a("v_mul_f32 v%d, v%d, v%d" % (t0, t0, t2)); a("v_mul_f32 v%d, v%d, v%d" % (t1, t1, t3))
    a("v_cvt_pk_bf16_f32 v%d, v%d, v%d" % (t0, t0, t1))
    a("v_and_b32 v%d, 0xffff0000, v%d" % (t1, t0)); a("v_lshlrev_b32 v%d, 16, v%d" % (t0, t0))
    a("v_add_f32 v%d, v%d, v%d" % (t0, t0, t1))
    red8("v_add_f32", [t0]); red_rows("v_add_f32", [t0], [t1])
    a("s_waitcnt lgkmcnt(0)")
    a("s_add_u32 s33, s33, 1")
    for r in range(10):
        sx = 60 + r // 2
        if r % 2 == 0:
            a("s_and_b32 s66, s%d, 0xffff" % sx); a("s_lshl_b32 s67, s%d, 16" % sx)
        else:
            a("s_lshr_b32 s66, s%d, 16" % sx); a("s_and_b32 s67, s%d, 0xffff0000" % sx)
        a.wait_vm(pop[r])
        for q in range(4):
            a("v_dot2c_f32_bf16 v%d, s66, v%d" % (vD + 2 * q, PREG + 4 * r + q))
            a("v_dot2c_f32_bf16 v%d, s67, v%d" % (vD + 2 * q + 1, PREG + 4 * r + q))
        if r in (3, 6, 9): pump(1, throttle=False)
    stamp()
    a("s_mov_b32 exec_hi, 0xf")
    a("ds_write_b128 v%d, %s" % (aPw, r4(vD)))
    a("ds_write_b128 v%d, %s offset:16" % (aPw, r4(vD + 4)))
    a("s_mov_b64 exec, 1")
    a("ds_write_b32 v%d, v%d offset:1152" % (aPw, t0))
    a("s_mov_b64 exec, -1")
    a("s_waitcnt lgkmcnt(0)")
    a("s_barrier")
    gA, gB = vB, vB + 4
    if code_kb: a.wait_vm(op_code)
    a("ds_read2_b32 v[%d:%d], v%d offset1:8" % (gA, gA + 1, aPr))
    a("ds_read_b32 v%d, v%d offset:64" % (gA + 2, aPr))
    a("ds_read2_b32 v[%d:%d], v%d offset1:48" % (gB, gB + 1, aPr2))
    a("ds_read_b32 v%d, v%d offset:1152" % (t0, aZ))
    a("v_mov_b32 v%d, s33" % (gA + 3)); a("v_mov_b32 v%d, 0" % (gB + 2)); a("v_mov_b32 v%d, s33" % (gB + 3))
    a("s_waitcnt lgkmcnt(0)")
    red8("v_add_f32", [gA, gA + 1, gA + 2, gB, gB + 1, t0])
    a("s_mov_b64 exec, s[68:69]")
    a("buffer_store_dwordx4 %s, v%d, s[52:55], s%d offen sc1" % (r4(gA), vJ16, sH0stA))
    a("s_mov_b32 exec_hi, 0x0101")
    a("buffer_store_dwordx4 %s, v%d, s[52:55], s%d offen sc1" % (r4(gB), vJ16, sH0stB))
    a("s_mov_b64 exec, -1")
    stamp()
    pump(1)
    rbf(t0, t0)
    a("v_mul_f32 v%d, 0x%08x, v%d" % (t0, LOG2E | 0x80000000, t0))
    a("v_exp_f32 v%d, v%d" % (t0, t0))
    a("v_add_f32 v%d, 1.0, v%d" % (t0, t0))
    a("v_rcp_f32 v%d, v%d" % (t0, t0))
    rbf(vG, t0)
    a("v_sub_f32 v%d, 1.0, v%d" % (t0, vG))
    rbf(vOMG, t0)
    oA, oB, aQw, aQr = vT, vT + 1, vT + 2, vT + 3
    a("v_mul_u32_u24 v%d, %d, v%d" % (oB, H0R, vC))
    a("v_add_u32 v%d, v%d, v%d" % (oA, oB, vJ16))
    a("v_min_u32 v%d, 80, v%d" % (aQw, vJ16))
    a("v_add_u32 v%d, v%d, v%d" % (oB, oB, aQw))
    a("s_mul_i32 s3, s32, 48"); a("s_add_u32 s3, s3, %d" % LQ)
    a("v_lshrrev_b32 v%d, 3, v%d" % (aQw, vJ16))
    a("v_add_u32 v%d, s3, v%d" % (aQw, aQw))
    a("v_lshlrev_b32 v%d, 4, v%d" % (aQr, vC))
    for r in range(8): a("v_mov_b32 v%d, 0" % (vS + r))
    pump_to("K", g0)
    ldA = "buffer_load_dwordx4 %s, v%d, s[52:55], s%d offen sc1" % (r4(gA), oA, sH0ldA)
    ldB = "buffer_load_dwordx4 %s, v%d, s[52:55], s%d offen sc1" % (r4(gB), oB, sH0ldB)
    o1 = a(ldA); o2 = a(ldB)
    pump(g0w)
    poll("h0", [o1, o2], [gA + 3, gB + 3], [ldA, ldB])
    stamp()
    red8("v_add_f32", [gA, gA + 1, gA + 2, gB, gB + 1])
    a("v_cvt_pk_bf16_f32 v%d, v%d, v%d" % (gA, gA, gA + 1))
    a("v_cvt_pk_bf16_f32 v%d, v%d, v%d" % (gA + 2, gA + 2, gA + 2))
    a("s_mov_b64 exec, s[68:69]")
    a("ds_write_b16 v%d, v%d" % (aQw, gA))
    a("ds_write_b16_d16_hi v%d, v%d offset:16" % (aQw, gA))
    a("ds_write_b16 v%d, v%d offset:32" % (aQw, gA + 2))
    a("s_mov_b64 exec, -1")
    u0, u1, u2 = gA + 1, gA + 3, gB + 2
    rbf(gB, gB); rbf(gB + 1, gB + 1)
    a("v_mul_f32 v%d, v%d, v%d" % (u0, gB, gB))
    a("v_mov_b32 v%d, 0x3d372713" % u1)
    a("v_fma_f32 v%d, v%d, v%d, 1.0" % (u0, u0, u1))
    a("v_mul_f32 v%d, v%d, v%d" % (u0, u0, gB))
    a("v_mul_f32 v%d, 0xc0135761, v%d" % (u0, u0))
    a("v_exp_f32 v%d, v%d" % (u0, u0))
    a("v_add_f32 v%d, 1.0, v%d" % (u0, u0))
    a("v_rcp_f32 v%d, v%d" % (u0, u0))
    a("v_mul_f32 v%d, v%d, v%d" % (u0, u0, gB))
    rbf(u0, u0)
    a("v_mul_f32 v%d, v%d, v%d" % (u0, u0, gB + 1))
    a("v_cvt_pk_bf16_f32 v%d, v%d, v%d" % (u0, u0, u0))
    for r in range(4): a("v_and_b32 v%d, v%d, v%d" % (vBd + r, u0, vM + r))
    pump(1)
    a("s_waitcnt lgkmcnt(0)")
    a("s_barrier")
    for t in range(3):
        a("ds_read_b128 %s, v%d offset:%d" % (r4(vQ + 4 * t), aQr, LQ + 128 * t))
    pump(1)
    a("s_waitcnt lgkmcnt(0)")
    stamp()
    for b in range(8):
        while 3 * b + 2 not in kop: pump()
        a.wait_vm(kop[3 * b + 2])
        for t in range(3):
            for r in range(4):
                a("v_dot2c_f32_bf16 v%d, v%d, v%d" % (vS + b, kreg(3 * b + t) + r, vQ + 4 * t + r))
        if b % 2 == 1: pump(1)
    S = list(range(vS, vS + 8))
    red8("v_add_f32", S)
    pump(1)
    for b in range(0, 8, 2):
        a("v_cvt_pk_bf16_f32 v%d, v%d, v%d" % (vS + b, vS + b, vS + b + 1))
    for b in range(0, 8, 2):
        a("v_and_b32 v%d, 0xffff0000, v%d" % (vS + b + 1, vS + b)); a("v_lshlrev_b32 v%d, 16, v%d" % (vS + b, vS + b))
    for b in range(8): a("v_mul_f32 v%d, 0x%08x, v%d" % (vS + b, SCALE, vS + b))
    for b in range(0, 8, 2):
        a("v_cvt_pk_bf16_f32 v%d, v%d, v%d" % (vS + b, vS + b, vS + b + 1))
    for b in range(0, 8, 2):
        a("v_and_b32 v%d, 0xffff0000, v%d" % (vS + b + 1, vS + b)); a("v_lshlrev_b32 v%d, 16, v%d" % (vS + b, vS + b))
    vm_, vl_ = gA, gA + 1
    a("v_max3_f32 v%d, v%d, v%d, v%d" % (vm_, vS, vS + 1, vS + 2))
    a("v_max3_f32 v%d, v%d, v%d, v%d" % (vl_, vS + 3, vS + 4, vS + 5))
    a("v_max3_f32 v%d, v%d, v%d, v%d" % (vm_, vm_, vS + 6, vS + 7))
    a("v_max_f32 v%d, v%d, v%d" % (vm_, vm_, vl_))
    red_rows("v_max_f32", [vm_], [vl_])
    for b in range(8): a("v_sub_f32 v%d, v%d, v%d" % (vS + b, vS + b, vm_))
    for b in range(8): a("v_mul_f32 v%d, 0x%08x, v%d" % (vS + b, LOG2E, vS + b))
    for b in range(8): a("v_exp_f32 v%d, v%d" % (vS + b, vS + b))
    a("v_add_f32 v%d, v%d, v%d" % (vl_, vS, vS + 1))
    a("v_add_f32 v%d, v%d, v%d" % (gA + 2, vS + 2, vS + 3))
    a("v_add_f32 v%d, v%d, v%d" % (gA + 3, vS + 4, vS + 5))
    a("v_add_f32 v%d, v%d, v%d" % (gB, vS + 6, vS + 7))
    a("v_add_f32 v%d, v%d, v%d" % (vl_, vl_, gA + 2)); a("v_add_f32 v%d, v%d, v%d" % (gB, gB, gA + 3))
    a("v_add_f32 v%d, v%d, v%d" % (vl_, vl_, gB))
    red_rows("v_add_f32", [vl_], [gB])
    a("v_mov_b32 v%d, 0" % (gA + 2)); a("v_mov_b32 v%d, s33" % (gA + 3))
    a("v_mov_b32 v%d, v%d" % (vT + 4, vm_))
    a("s_mov_b64 exec, 1")
    a("buffer_store_dwordx4 %s, v%d, s[52:55], s%d offen sc1" % (r4(gA), vJ16, sH05st))
    a("s_mov_b64 exec, -1")
    stamp()
    pump(1)
    oL16, aOw, aOr, oH1, oWo, oWd, aYw, aY0, aY1, aY2, oH2, oOut = range(vX, vX + 12)
    a("v_lshlrev_b32 v%d, 4, v0" % oL16)
    a("v_lshrrev_b32 v%d, 4, v0" % vT)
    a("v_lshl_add_u32 v%d, v%d, 3, v%d" % (aOw, vT, vC))
    a("v_lshlrev_b32 v%d, 4, v%d" % (aYw, aOw))
    a("s_mul_i32 s3, s32, %d" % SO); a("s_add_u32 s3, s3, %d" % LO)
    a("v_add_u32 v%d, s3, v%d" % (aOw, aYw))
    a("s_mul_i32 s3, s32, %d" % SY); a("s_add_u32 s3, s3, %d" % LY)
    a("v_add_u32 v%d, s3, v%d" % (aYw, aYw))
    a("s_lshr_b32 s3, s32, 2"); a("s_lshl_b32 s3, s3, 7"); a("s_and_b32 s34, s32, 3"); a("s_lshl_b32 s34, s34, 2")
    a("s_add_u32 s3, s3, s34"); a("s_add_u32 s3, s3, %d" % LO)
    a("v_mul_u32_u24 v%d, %d, v%d" % (aOr, SO, vC))
    a("v_add3_u32 v%d, v%d, v%d, s3" % (aOr, aOr, vJ16))
    a("v_lshl_add_u32 v%d, v%d, 10, v%d" % (oH1, vC, vJ16))
    a("v_and_b32 v%d, 15, v0" % (vT + 1))
    a("v_mul_u32_u24 v%d, 2560, v%d" % (oWo, vT))
    a("v_lshl_add_u32 v%d, v%d, 4, v%d" % (oWo, vT + 1, oWo))
    a("v_mov_b32 v%d, 0x80000000" % (vT + 2))
    a("v_cmp_lt_u32 vcc, 9, v%d" % (vT + 1))
    a("v_cndmask_b32 v%d, v%d, v%d, vcc" % (oWo, oWo, vT + 2))
    a("v_cmp_lt_u32 vcc, 47, v0")
    a("v_cndmask_b32 v%d, v%d, v%d, vcc" % (oWd, oWo, vT + 2))
    a("v_mul_u32_u24 v%d, %d, v%d" % (aY0, SY, vC))
    a("v_add_u32 v%d, v%d, v%d" % (aY0, aY0, vJ16))
    for e, r in ((2, aY2), (1, aY1), (0, aY0)):
        a("s_mul_i32 s3, s32, 3"); a("s_add_u32 s3, s3, %d" % e)
        a("s_lshr_b32 s34, s3, 2"); a("s_lshl_b32 s34, s34, 7"); a("s_and_b32 s3, s3, 3"); a("s_lshl_b32 s3, s3, 2")
        a("s_add_u32 s3, s3, s34"); a("s_add_u32 s3, s3, %d" % LY)
        a("v_add_u32 v%d, s3, v%d" % (r, aY0))
    a("v_and_b32 v%d, 31, v0" % oH2); a("v_lshlrev_b32 v%d, 9, v%d" % (oH2, oH2))
    a("v_lshrrev_b32 v%d, 5, v0" % (vT + 1))
    a("v_lshl_add_u32 v%d, v%d, 4, v%d" % (oH2, vT + 1, oH2))
    a("s_lshr_b32 s3, s30, 2"); a("s_mul_i32 s3, s3, 48"); a("s_and_b32 s34, s30, 3"); a("s_lshl_b32 s34, s34, 2")
    a("s_add_u32 s3, s3, s34"); a("s_mul_i32 s34, s31, 160"); a("s_add_u32 s3, s3, s34")
    a("v_lshl_add_u32 v%d, v%d, 1, s3" % (oOut, vT + 1))
    pump_to("V", g1)
    ld5 = "buffer_load_dwordx4 %s, v%d, s[52:55], s%d offen sc1" % (r4(gB), oL16, sH05ld)
    o5 = a(ld5)
    pump(g1w)
    poll("h05", [o5], [gB + 3], [ld5])
    stamp()
    vM_ = gA
    a("v_mov_b32 v%d, v%d" % (vM_, gB))
    red8("v_max_f32", [vM_]); red_rows("v_max_f32", [vM_], [gA + 1])
    a("v_sub_f32 v%d, v%d, v%d" % (gB, gB, vM_)); a("v_sub_f32 v%d, v%d, v%d" % (vT + 4, vT + 4, vM_))
    a("v_mul_f32 v%d, 0x%08x, v%d" % (gB, LOG2E, gB)); a("v_mul_f32 v%d, 0x%08x, v%d" % (vT + 4, LOG2E, vT + 4))
    a("v_exp_f32 v%d, v%d" % (gB, gB)); a("v_exp_f32 v%d, v%d" % (vT + 4, vT + 4))
    a("v_mul_f32 v%d, v%d, v%d" % (gB, gB, gB + 1))
    red8("v_add_f32", [gB]); red_rows("v_add_f32", [gB], [gA + 1])
    a("v_rcp_f32 v%d, v%d" % (gB, gB))
    a("v_mul_f32 v%d, v%d, v%d" % (gB, gB, vT + 4))
    for b in range(8): a("v_mul_f32 v%d, v%d, v%d" % (vS + b, vS + b, gB))
    for b in range(8): a("v_cvt_pk_bf16_f32 v%d, v%d, v%d" % (vS + b, vS + b, vS + b))
    oop = []
    def issue_o():
        for u in range(3):
            for par in range(2):
                if odepth and len(issued) >= odepth: a.wait_vm(issued[-odepth])
                op = a("buffer_load_dwordx4 %s, v%d, s[44:47], s%d offen offset:%d%s" % (r4(oreg(2 + 2 * u + par)), oWo, sWo, 1280 * par, of))
                oop.append(op); issued.append(op)
            if u < 2: a("s_add_u32 s%d, s%d, %d" % (sWo, sWo, 64 * 1280))
    def issue_d():
        for par in range(2):
            if odepth and len(issued) >= odepth: a.wait_vm(issued[-odepth])
            op = a("buffer_load_dwordx4 %s, v%d, s[48:51], s%d offen offset:%d%s" % (r4(oreg(par)), oWd, sWd, 1280 * par, of))
            oop.append(op); issued.append(op)
    o_issued = False
    for b in range(8):
        B = vB + 4 * (b % 2)
        for r in range(4): a("v_and_b32 v%d, v%d, v%d" % (B + r, vS + b, vM + r))
        while sidx[0] < len(stream) and not (3 * b + 2 in vop and vop[3 * b + 2] < a.vm_done): pump()
        if sidx[0] >= len(stream) and not o_issued and not o_after_v:
            stamp(); issue_d(); issue_o(); o_issued = True
        for t in range(3):
            a.wait_vm(vop[3 * b + t])
            a("v_mfma_f32_16x16x32_bf16 %s, %s, %s, %s" % (r4(vD + 4 * t), r4(vreg(3 * b + t)), r4(B), "0" if b == 0 else r4(vD + 4 * t)))
    if not o_issued:
        stamp(); issue_d(); issue_o()
    stamp()
    a("s_mov_b32 exec_lo, 0x00ff00ff"); a("s_mov_b32 exec_hi, 0xff00ff00")
    for t in range(3): a("ds_write_b128 v%d, %s offset:%d" % (aOw, r4(vD + 4 * t), 512 * t))
    a("s_mov_b64 exec, -1")
    a("s_waitcnt lgkmcnt(0)")
    a("s_barrier")
    for t in range(3):
        a("ds_read2st64_b32 v[%d:%d], v%d offset0:%d offset1:%d" % (vQ + 2 * t, vQ + 2 * t + 1, aOr, 2 * t, 2 * t + 1))
    a("v_mov_b32 v%d, s33" % (gA + 3))
    a("s_waitcnt lgkmcnt(0)")
    for t in range(3): a("v_add_f32 v%d, v%d, v%d" % (gA + t, vQ + 2 * t, vQ + 2 * t + 1))
    red8("v_add_f32", [gA, gA + 1, gA + 2])
    a("s_mov_b64 exec, s[68:69]")
    a("buffer_store_dwordx4 %s, v%d, s[52:55], s%d offen sc1" % (r4(gA), vJ16, sH1st))
    a("s_mov_b64 exec, -1")
    ld1 = "buffer_load_dwordx4 %s, v%d, s[52:55], s%d offen sc1" % (r4(gB), oH1, sH1ld)
    o1 = a(ld1)
    stamp()
    a.wait_vm(oop[1])
    for par in range(2):
        a("v_mfma_f32_16x16x32_bf16 %s, %s, %s, 0" % (r4(vYb + 4 * par), r4(oreg(par)), r4(vBd)))
    for r in range(8): a("v_mul_f32 v%d, v%d, v%d" % (vYb + r, vYb + r, vOMG))
    poll("h1", [o1], [gB + 3], [ld1])
    stamp()
    red8("v_add_f32", [gB, gB + 1, gB + 2])
    for u in range(3): a("v_cvt_pk_bf16_f32 v%d, v%d, v%d" % (gB + u, gB + u, gB + u))
    for u in range(3):
        for r in range(4): a("v_and_b32 v%d, v%d, v%d" % (vQ + 4 * u + r, gB + u, vM + r))
    for u in range(3):
        for par in range(2):
            a("v_mfma_f32_16x16x32_bf16 %s, %s, %s, %s" % (r4(vYa + 4 * par), r4(oreg(2 + 2 * u + par)), r4(vQ + 4 * u), "0" if u == 0 else r4(vYa + 4 * par)))
    for r in range(8): a("v_fma_f32 v%d, v%d, v%d, v%d" % (vYb + r, vYa + r, vG, vYb + r))
    for r in range(4):
        a("v_add_f32_dpp v%d, v%d, v%d row_ror:8 row_mask:0xf bank_mask:0xf" % (vYb + r, vYb + 4 + r, vYb + r))
    a("s_mov_b32 exec_lo, 0x00ff00ff"); a("s_mov_b32 exec_hi, 0x000000ff")
    a("ds_write_b128 v%d, %s" % (aYw, r4(vYb)))
    a("s_mov_b64 exec, -1")
    a("s_waitcnt lgkmcnt(0)")
    a("s_barrier")
    a("s_cmp_lt_u32 s32, 4")
    a("s_cbranch_scc0 L_final")
    a("ds_read_b32 v%d, v%d" % (gA, aY0)); a("ds_read_b32 v%d, v%d" % (gA + 1, aY1)); a("ds_read_b32 v%d, v%d" % (gA + 2, aY2))
    a("s_waitcnt lgkmcnt(0)")
    red8("v_add_f32", [gA, gA + 1, gA + 2])
    a("s_mov_b64 exec, s[68:69]")
    a("buffer_store_dwordx4 %s, v%d, s[52:55], s%d offen sc1" % (r4(gA), vJ16, sH2st))
    a("s_branch L_done")
    a.label("L_final")
    a("s_cmp_eq_u32 s32, 7")
    a("s_cbranch_scc0 L_done")
    a("s_cmp_lt_u32 s30, 16")
    a("s_cbranch_scc0 L_done")
    ld2 = "buffer_load_dwordx4 %s, v%d, s[52:55], s%d offen sc1" % (r4(gB), oH2, sH2ld)
    o2 = a(ld2)
    poll("h2", [o2], [gB + 3], [ld2])
    Y = [gB, gB + 1, gB + 2]
    red8("v_add_f32", Y); red_rows("v_add_f32", Y, [gA, gA + 1, gA + 2], upto32=True)
    a("v_cvt_pk_bf16_f32 v%d, v%d, v%d" % (gB, gB, gB + 1))
    a("v_cvt_pk_bf16_f32 v%d, v%d, v%d" % (gB + 2, gB + 2, gB + 2))
    a("s_mov_b32 exec_lo, 1"); a("s_mov_b32 exec_hi, 1")
    a("buffer_store_short v%d, v%d, s[56:59], 0 offen" % (gB, oOut))
    a("s_cmp_lt_u32 s30, 12")
    a("s_cbranch_scc0 L_done")
    a("buffer_store_short_d16_hi v%d, v%d, s[56:59], 0 offen offset:16" % (gB, oOut))
    a("buffer_store_short v%d, v%d, s[56:59], 0 offen offset:32" % (gB + 2, oOut))
    a("s_cmp_eq_u32 s2, 0")
    a("s_cbranch_scc0 L_done")
    a("s_mov_b64 exec, 1")
    a("v_mov_b32 v%d, s33" % gA); a("v_mov_b32 v%d, 0" % (gA + 1))
    a("buffer_store_dword v%d, v%d, s[52:55], 0 offen" % (gA, gA + 1))
    a.label("L_done")
    if stamps:
        a("s_waitcnt vmcnt(0)")
        stamp()
        a("s_waitcnt lgkmcnt(0)")
        a("s_lshl_b32 s3, s2, 3"); a("s_add_u32 s3, s3, s32"); a("s_lshl_b32 s3, s3, 7")
        a("s_add_u32 s28, s28, s3"); a("s_addc_u32 s29, s29, 0"); a("s_add_u32 s28, s28, 0x40000000"); a("s_addc_u32 s29, s29, 0")
        a("s_mov_b64 exec, 1")
        a("v_mov_b32 v1, 0")
        for k in range(nst[0]):
            a("v_mov_b32 v2, s%d" % (70 + 2 * k)); a("v_mov_b32 v3, s%d" % (71 + 2 * k))
            a("global_store_dwordx2 v1, v[2:3], s[28:29] offset:%d" % (8 * k)); a("s_nop 1")
        a("s_getreg_b32 s4, hwreg(HW_REG_XCC_ID)"); a("v_mov_b32 v2, s4"); a("v_mov_b32 v3, 0")
        a("global_store_dwordx2 v1, v[2:3], s[28:29] offset:120")
    a.label("L_end")
    a("s_endpgm")
    a.raw(".fill (%s + %d - .) / 4, 4, 0xbf800000" % (KN, max(code_kb, 8) * 1024 + 256))
    a.raw('.section .rodata,"a"'); a.raw(".p2align 6"); a.raw(".amdhsa_kernel " + KN)
    for l in ("next_free_vgpr 256", "next_free_sgpr 102", "accum_offset 256", "group_segment_fixed_size 0", "kernarg_size 104",
              "user_sgpr_count 2", "user_sgpr_kernarg_segment_ptr 1", "system_sgpr_workgroup_id_x 1", "float_denorm_mode_32 3"):
        a.raw("  .amdhsa_" + l)
    a.raw(".end_amdhsa_kernel")
    open(path, "w").write(a.text())

if __name__ == "__main__":
    gen(sys.argv[1], stamps=(len(sys.argv) > 2))
```
